```python
import torch

def _softmax(x, axis=-1):
    return torch.softmax(x, dim=axis)
def _gelu(x):
    return torch.nn.functional.gelu(x, approximate="tanh")
def _silu(x):
    return torch.nn.functional.silu(x)
def _sigmoid(x):
    return torch.sigmoid(x)
def _layernorm(x, axis=-1, eps=1e-5):
    m = x.mean(dim=axis, keepdim=True)
    v = x.var(dim=axis, keepdim=True, unbiased=False)
    return (x - m) / torch.sqrt(v + eps)
def _scatter_add(tgt, idx, src, axis=0):
    return tgt.clone().index_add_(axis, idx, src)
def _segment_sum(src, seg, n):
    out = torch.zeros((n,) + src.shape[1:], dtype=src.dtype)
    return out.index_add_(0, seg, src)
def _pad(x, pw):
    flat = tuple(v for pair in reversed(pw) for v in pair)
    return torch.nn.functional.pad(x, flat)

kernel_name = 'recurrent_scan__sliding_block_cached__glu_gated_bilinear__prompt'

def setup_inputs():

    _w = (lambda a: (lambda t: t.to(torch.bfloat16) if t.is_floating_point() else t)(torch.as_tensor(a)))
    def _A_setup():
        B, Sq, D = 1, 2048, 1024
        Hq, Hkv, Sk, Dh = 32, 4, 2048, 128
        assert Hq % Hkv == 0, (Hq, Hkv)
        return {
            "x": _w((lambda *s: torch.randn(*s, dtype=torch.bfloat16) * 0.05)(B, Sq, D)),
            "k_cache": _w((lambda *s: torch.randn(*s, dtype=torch.bfloat16) * 1.6)(B, Hkv, Sk, Dh)),
            "v_cache": _w((lambda *s: torch.randn(*s, dtype=torch.bfloat16) * 1.6)(B, Hkv, Sk, Dh)),
            "wq": _w((lambda *s: torch.randn(*s, dtype=torch.bfloat16) * 1.6)(D, Hq * Dh) * (D ** -0.5)),
            "wo": _w((lambda *s: torch.randn(*s, dtype=torch.bfloat16) * 1.6)(Hq * Dh, D) * ((Hq * Dh) ** -0.5)),
        }
    _A_in = _A_setup()

    def _B_setup():
        B, S, D, F = 1, 2048, 1024, 3584
        return {
            "x": _w((lambda *s: torch.randn(*s, dtype=torch.bfloat16) * 0.05)(B, S, D)),
            "w_gate": _w((lambda *s: torch.randn(*s, dtype=torch.bfloat16) * 0.2)(D, F) * (D ** -0.5)),
            "w_up": _w((lambda *s: torch.randn(*s, dtype=torch.bfloat16) * 0.2)(D, F) * (D ** -0.5)),
            "w_down": _w((lambda *s: torch.randn(*s, dtype=torch.bfloat16) * 0.2)(F, D) * (F ** -0.5)),
        }
    _B_in = _B_setup()

    return {
        "A_x": _A_in["x"],
        "A_k_cache": _A_in["k_cache"],
        "A_v_cache": _A_in["v_cache"],
        "A_wq": _A_in["wq"],
        "A_wo": _A_in["wo"],
        "B_x": _B_in["x"],
        "B_w_gate": _B_in["w_gate"],
        "B_w_up": _B_in["w_up"],
        "B_w_down": _B_in["w_down"],
    }

def reference(A_x, A_k_cache, A_v_cache, A_wq, A_wo, B_x, B_w_gate, B_w_up, B_w_down):
    def _A_ref(x, k_cache, v_cache, wq, wo):
        B, Sq, D = x.shape
        Hq, Dh = 32, 128
        Hkv, Sk = k_cache.shape[1], k_cache.shape[2]
        W = min(4096, max(256, Sk // 4))
        rep = Hq // Hkv
        q = (lambda x, *d: x.permute(*d))((x @ wq).reshape(B, Sq, Hq, Dh), 0, 2, 1, 3)
        k = (lambda x, n, axis: torch.repeat_interleave(x, n, dim=axis))(k_cache[:, :, Sk - W:, :], rep, axis=1)
        v = (lambda x, n, axis: torch.repeat_interleave(x, n, dim=axis))(v_cache[:, :, Sk - W:, :], rep, axis=1)
        scores = torch.einsum("bhqd,bhkd->bhqk", q, k) * (Dh ** -0.5)
        p = _softmax(scores, axis=-1)
        o = torch.einsum("bhqk,bhkd->bhqd", p, v)
        return (lambda x, *d: x.permute(*d))(o, 0, 2, 1, 3).reshape(B, Sq, Hq * Dh) @ wo

    def _B_ref(x, w_gate, w_up, w_down):
        g = torch.einsum("bsd,df->bsf", x, w_gate)
        u = torch.einsum("bsd,df->bsf", x, w_up)
        h = g * u
        return torch.einsum("bsf,fd->bsd", h, w_down)

    x = A_x
    xn = _layernorm(x, axis=-1)
    s = _A_ref(xn, A_k_cache, A_v_cache, A_wq, A_wo)
    g = _silu(_B_ref(xn, B_w_gate, B_w_up, B_w_down))
    return x + s * g
```

```python
import re

TRANS = ("v_exp_f32", "v_log_f32", "v_rcp_f32", "v_rsq_f32", "v_sqrt_f32", "v_sin_f32", "v_cos_f32",
         "v_rcp_iflag_f32")


def vr(b, n=1):
    return f"v{b}" if n == 1 else f"v[{b}:{b+n-1}]"


def ar(b, n=1):
    return f"a{b}" if n == 1 else f"a[{b}:{b+n-1}]"


def sr(b, n=1):
    return f"s{b}" if n == 1 else f"s[{b}:{b+n-1}]"


class Reg:
    def __init__(self, kind, base, n=1):
        self.kind, self.base, self.n = kind, base, n

    def __getitem__(self, ix):
        if isinstance(ix, slice):
            st = ix.start or 0
            en = ix.stop if ix.stop is not None else self.n
            assert 0 <= st < en <= self.n, (st, en, self.n)
            return Reg(self.kind, self.base + st, en - st)
        assert 0 <= ix < self.n, (ix, self.n)
        return Reg(self.kind, self.base + ix, 1)

    def __str__(self):
        return (vr if self.kind == 'v' else ar)(self.base, self.n)
    __repr__ = __str__
    def __format__(self, spec):
        return str(self)


class Alloc:
    def __init__(self, kind, lo, hi):
        self.kind, self.lo, self.hi, self.cur = kind, lo, hi, lo
        self.hw = lo

    def __call__(self, n=1, align=None):
        al = align or (1 if n == 1 else 2)
        self.cur = (self.cur + al - 1) // al * al
        r = Reg(self.kind, self.cur, n)
        self.cur += n
        assert self.cur <= self.hi, f"out of {self.kind} regs: {self.cur} > {self.hi}"
        self.hw = max(self.hw, self.cur)
        return r

    def reset(self, to):
        self.cur = to


_REG_RE = re.compile(r"\b([vas])(?:(\d+)\b|\[(\d+):(\d+)\])")


def regs_of(op):
    out = set()
    op = op.strip()
    if op in ("vcc", "vcc_lo", "vcc_hi"):
        return {('s', 106), ('s', 107)} if op == "vcc" else {('s', 106 if op == "vcc_lo" else 107)}
    if op == "m0":
        return {('m', 0)}
    if op in ("exec", "exec_lo", "exec_hi"):
        return {('e', 0)}
    for m in _REG_RE.finditer(op):
        k = m.group(1)
        if m.group(2) is not None:
            out.add((k, int(m.group(2))))
        else:
            for i in range(int(m.group(3)), int(m.group(4)) + 1):
                out.add((k, i))
    return out


def split_ops(rest):
    ops, depth, cur = [], 0, ""
    for ch in rest:
        if ch == '[':
            depth += 1
        elif ch == ']':
            depth -= 1
        if ch == ',' and depth == 0:
            ops.append(cur.strip()); cur = ""
        else:
            cur += ch
    if cur.strip():
        ops.append(cur.strip())
    return ops


class Ins:
    __slots__ = ("text", "op", "cls", "dst", "src", "srcC", "srcAB", "passes", "states", "target", "uncond",
                 "trans", "dpp", "wide_store_data", "lds_dma", "sgpr_src", "readlane", "perm", "sdwa")

    def __init__(self, text):
        self.text = text
        t = text.split(";")[0].strip()
        parts = t.split(None, 1)
        op = parts[0]
        rest = parts[1] if len(parts) > 1 else ""
        self.op = op
        self.dst, self.src, self.srcC, self.srcAB = set(), set(), set(), set()
        self.passes = 0
        self.states = 1
        self.target = None
        self.uncond = False
        self.trans = False
        self.dpp = False
        self.wide_store_data = set()
        self.lds_dma = False
        self.readlane = False
        self.perm = False
        self.sdwa = False
        ops = split_ops(rest)
        mods = ""
        if ops:
            last = ops[-1].split(None, 1)
            if len(last) > 1:
                ops[-1] = last[0]
                mods = last[1]
        R = [regs_of(o) for o in ops]
        if op.startswith("v_mfma"):
            self.cls = "mfma"
            self.dst = R[0]
            self.srcAB = R[1] | R[2]
            self.srcC = R[3]
            self.src = self.srcAB | self.srcC
            self.passes = 8 if "32x32x16" in op else 4
            assert "32x32x16" in op or "16x16x32" in op, op
        elif op.startswith("v_"):
            self.cls = "valu"
            base = op.replace("_e32", "").replace("_e64", "").replace("_dpp", "").replace("_sdwa", "")
            self.trans = base in TRANS
            self.dpp = ("_dpp" in op) or any(x in mods for x in ("quad_perm", "row_", "wave_", "bcast"))
            self.sdwa = "_sel:" in mods and "op_sel" not in mods
            if base.startswith("v_permlane") and "swap" in base:
                self.dst = R[0] | R[1]; self.src = R[0] | R[1]; self.perm = True
            elif base.startswith("v_cmp"):
                self.dst = R[0]; self.src = set().union(*R[1:])
                if base.startswith("v_cmpx"):
                    self.dst |= {('e', 0)}
            elif base in ("v_add_co_u32", "v_sub_co_u32", "v_subrev_co_u32", "v_addc_co_u32", "v_subb_co_u32",
                          "v_mad_u64_u32", "v_div_scale_f32"):
                self.dst = R[0] | R[1]; self.src = set().union(*R[2:])
            elif base in ("v_readfirstlane_b32", "v_readlane_b32"):
                self.dst = R[0]; self.src = set().union(*R[1:]); self.readlane = True
            elif base == "v_nop":
                pass
            else:
                self.dst = R[0]; self.src = set().union(*R[1:]) if len(R) > 1 else set()
                if base in ("v_fmac_f32", "v_dot2c_f32_bf16", "v_pk_fmac_f16", "v_writelane_b32") or self.dpp:
                    self.src |= R[0]
                if base == "v_cndmask_b32" and len(R) == 3:
                    self.src |= {('s', 106), ('s', 107)}
                if base == "v_div_fmas_f32":
                    self.src |= {('s', 106), ('s', 107)}
        elif op.startswith("ds_"):
            self.cls = "ds"
            if op.startswith("ds_read") or op.startswith("ds_bpermute") or op.startswith("ds_permute") \
                    or op.startswith("ds_swizzle") or "_rtn" in op:
                self.dst = R[0]; self.src = set().union(*R[1:])
            else:
                self.src = set().union(*R)
        elif op.startswith("buffer_") or op.startswith("global_"):
            self.cls = "vmem"
            words = mods.split()
            if op in ("buffer_wbl2", "buffer_inv"):
                pass
            elif "lds" in words or "_lds_" in op:
                self.lds_dma = True
                self.src = set().union(*R) | {('m', 0)}
            elif "_load" in op:
                self.dst = R[0]; self.src = set().union(*R[1:])
            elif "_store" in op:
                self.src = set().union(*R)
                data = R[0] if op.startswith("buffer_") else R[1]
                if op.endswith("x4") or op.endswith("x3"):
                    self.wide_store_data = data
            elif "_atomic" in op:
                self.src = set().union(*R)
                if "sc0" in words:
                    self.dst = R[0]
            else:
                raise ValueError(text)
        elif op.startswith("s_"):
            self.cls = "salu"
            if op == "s_nop":
                self.states = int(ops[0], 0) + 1
            elif op in ("s_branch",):
                self.target = ops[0]; self.uncond = True
            elif op.startswith("s_cbranch"):
                self.target = ops[0]
            elif op == "s_endpgm":
                self.uncond = True
            elif op in ("s_waitcnt", "s_barrier", "s_sleep", "s_setprio"):
                pass
            elif op.startswith("s_cmp") or op.startswith("s_bitcmp"):
                self.src = set().union(*R)
            elif op.startswith("s_load") or op.startswith("s_memtime") or op.startswith("s_memrealtime"):
                self.cls = "smem"
                self.dst = R[0]; self.src = set().union(*R[1:]) if len(R) > 1 else set()
            else:
                self.dst = R[0] if R else set()
                self.src = set().union(*R[1:]) if len(R) > 1 else set()
                if "saveexec" in op:
                    self.dst |= {('e', 0)}
        else:
            raise ValueError("unknown instr: " + text)


def isvec(r):
    return r[0] in "va"


def required_states(p, c):
    need = 0
    if p.cls == "valu":
        vd = {r for r in p.dst if isvec(r)}
        sd = {r for r in p.dst if r[0] == 's'}
        if c.cls == "mfma" and vd & c.src:
            need = max(need, 2)
        if c.cls == "valu":
            if p.trans and not c.trans and vd & c.src:
                need = max(need, 1)
            if c.readlane and vd & c.src:
                need = max(need, 1)
            if c.dpp and vd & c.src:
                need = max(need, 2)
            if c.perm and vd & c.src:
                need = max(need, 2)
            if p.sdwa and vd & (c.src | c.dst):
                need = max(need, 1)
            if sd & c.src:
                need = max(need, 4 if c.readlane else 2)
        if c.cls == "vmem" and sd & c.src:
            need = max(need, 5)
        if ('e', 0) in p.dst and c.cls in ("valu", "mfma"):
            need = max(need, 5)
    elif p.cls == "mfma":
        big = {4: 8, 8: 12}[p.passes]
        if c.cls == "mfma":
            if p.dst & c.srcAB:
                need = max(need, big)
            if p.dst & c.srcC:
                if not (p.dst == c.srcC and p.passes == c.passes):
                    need = max(need, big - 2)
            elif p.dst & c.dst:
                need = max(need, big - 2)
        elif c.cls in ("valu", "ds", "vmem"):
            if p.dst & (c.src | c.dst):
                need = max(need, big)
            if c.cls == "valu" and p.srcC & c.dst:
                need = max(need, {4: 3, 8: 7}[p.passes])
    elif p.cls == "salu":
        if ('m', 0) in p.dst and c.lds_dma:
            need = max(need, 1)
    elif p.cls == "vmem":
        if p.wide_store_data and p.wide_store_data & c.dst:
            need = max(need, 2 if c.cls in ("valu", "mfma") else 1)
    return need


MAXLOOK = 12


class Kern:
    def __init__(self, name):
        self.name = name
        self.static = []
        self.trace = []
        self.ptr = None
        self.sites = []
        self.loops = {}
        self._lab = 0
        self.notrace = False

    def _put(self, item):
        if self.ptr is None:
            self.static.append(item)
            return item
        cur = self.static[self.ptr]
        if item[0] == 'w':
            assert cur[0] == 'w', (cur, item)
        else:
            assert cur == item, f"loop replay mismatch: {cur} vs {item}"
        self.ptr += 1
        return cur

    def __call__(self, text, tag=None):
        for l in text.strip("\n").split("\n"):
            l = l.strip()
            if not l:
                continue
            if l.startswith(";"):
                self._put(('c', l)); continue
            self._put(('i', l))
            op = l.split()[0]
            if self.notrace:
                continue
            if op.startswith("buffer_") or op.startswith("global_"):
                if op not in ("buffer_wbl2", "buffer_inv"):
                    self.trace.append(('vm', tag))
            elif op.startswith("ds_"):
                self.trace.append(('lg', tag))
            elif op.startswith("s_load") or op.startswith("s_memtime") or op.startswith("s_memrealtime"):
                self.trace.append(('sm', tag))
            elif op == "s_waitcnt":
                m = re.search(r"vmcnt\((\d+)\)", l); vm = int(m.group(1)) if m else None
                m = re.search(r"lgkmcnt\((\d+)\)", l); lg = int(m.group(1)) if m else None
                self.trace.append(('fw', vm, lg))

    def label(self, name):
        self._put(('l', name))

    def newlabel(self, base="L"):
        self._lab += 1
        return f"{self.name}_{base}{self._lab}"

    def need(self, vm=(), lg=()):
        if isinstance(vm, (str, tuple)) and not (isinstance(vm, tuple) and len(vm) == 0) and not isinstance(vm, list):
            vm = [vm]
        if isinstance(lg, (str, tuple)) and not (isinstance(lg, tuple) and len(lg) == 0) and not isinstance(lg, list):
            lg = [lg]
        if self.ptr is None:
            site = len(self.sites)
            self.sites.append({'vm': None, 'lg': None})
            self._put(('w', site))
        else:
            site = self._put(('w', -1))[1]
        self.trace.append(('need', site, list(vm), list(lg)))

    def loop_iter(self, name, it):
        if it == 0:
            assert self.ptr is None
            self.loops[name] = [len(self.static), None]
        else:
            if self.ptr is None:
                self.loops[name][1] = len(self.static)
            else:
                assert self.ptr == self.loops[name][1], "loop body length mismatch"
            self.ptr = self.loops[name][0]

    def loop_end(self, name):
        if self.ptr is not None:
            assert self.ptr == self.loops[name][1], "loop body length mismatch"
            self.ptr = None

    def _resolve(self):
        VMAX, LMAX = 63, 15
        for s in self.sites:
            s['vm'] = None; s['lg'] = None
        vs = ls = 0
        vmap, lmap = {}, {}
        smem_open = False
        inst = []
        for ev in self.trace:
            if ev[0] == 'vm':
                if ev[1] is not None: vmap[ev[1]] = vs
                vs += 1
            elif ev[0] == 'lg':
                if ev[1] is not None: lmap[ev[1]] = ls
                ls += 1
            elif ev[0] == 'sm':
                smem_open = True
            elif ev[0] == 'fw':
                if ev[2] == 0: smem_open = False
            elif ev[0] == 'need':
                _, site, vt, lt = ev
                S = self.sites[site]
                vi = max([vmap[t] for t in vt], default=None)
                li = max([lmap[t] for t in lt], default=None)
                if vi is not None:
                    n = vs - vi - 1
                    if n < VMAX:
                        S['vm'] = n if S['vm'] is None else min(S['vm'], n)
                if li is not None:
                    n = 0 if smem_open else ls - li - 1
                    if n < LMAX:
                        S['lg'] = n if S['lg'] is None else min(S['lg'], n)
        act_vm = [False] * len(self.sites)
        act_lg = [False] * len(self.sites)
        while True:
            changed = False
            vs = ls = 0; cv = cl = 0
            vmap, lmap = {}, {}
            for ev in self.trace:
                if ev[0] == 'vm':
                    if ev[1] is not None: vmap[ev[1]] = vs
                    vs += 1
                    cv = max(cv, vs - VMAX)
                elif ev[0] == 'lg':
                    if ev[1] is not None: lmap[ev[1]] = ls
                    ls += 1
                    cl = max(cl, ls - LMAX)
                elif ev[0] == 'fw':
                    if ev[1] is not None: cv = max(cv, vs - ev[1])
                    if ev[2] is not None: cl = max(cl, ls - ev[2])
                elif ev[0] == 'need':
                    _, site, vt, lt = ev
                    S = self.sites[site]
                    vi = max([vmap[t] for t in vt], default=None)
                    li = max([lmap[t] for t in lt], default=None)
                    if vi is not None and cv < vi + 1 and not act_vm[site]:
                        act_vm[site] = True; changed = True
                    if li is not None and cl < li + 1 and not act_lg[site]:
                        act_lg[site] = True; changed = True
                    if act_vm[site]: cv = max(cv, vs - S['vm'])
                    if act_lg[site]: cl = max(cl, ls - S['lg'])
            if not changed:
                break
        for i, S in enumerate(self.sites):
            S['avm'] = act_vm[i]; S['alg'] = act_lg[i]

    def _flatten(self):
        self._resolve()
        out = []
        for it in self.static:
            if it[0] == 'w':
                S = self.sites[it[1]]
                parts = []
                if S['avm']: parts.append(f"vmcnt({S['vm']})")
                if S['alg']: parts.append(f"lgkmcnt({S['lg']})")
                if parts:
                    out.append(('i', "s_waitcnt " + " ".join(parts)))
            else:
                out.append(it)
        return out

    def finalize(self, verbose=True):
        items = self._flatten()
        total_nops = 0
        while True:
            ins = []
            labels = {}
            for idx, it in enumerate(items):
                if it[0] == 'i':
                    ins.append((idx, Ins(it[1])))
                elif it[0] == 'l':
                    labels[it[1]] = len(ins)
            n = len(ins)
            preds = [[] for _ in range(n + 1)]
            for i, (_, I) in enumerate(ins):
                if not I.uncond:
                    preds[i + 1].append(i)
                if I.target is not None:
                    assert I.target in labels, I.text
                    preds[labels[I.target]].append(i)
            fixes = []
            for i, (idx, C) in enumerate(ins):
                if C.cls in ("salu", "smem") :
                    continue
                worst = 0
                why = None
                stack = [(p, 0) for p in preds[i]]
                seen = {}
                while stack:
                    p, dist = stack.pop()
                    if seen.get(p, 99) <= dist:
                        continue
                    seen[p] = dist
                    P = ins[p][1]
                    r = required_states(P, C)
                    if r > dist and r - dist > worst:
                        worst = r - dist; why = P.text
                    nd = dist + P.states
                    if nd < MAXLOOK:
                        for q in preds[p]:
                            stack.append((q, nd))
                if worst:
                    fixes.append((idx, worst, why, C.text))
            if not fixes:
                break
            last_idx = None
            for idx, w, why, ct in reversed(fixes):
                pass
            applied = []
            for f in fixes:
                if applied and f[0] - applied[-1][0] < 16:
                    continue
                applied.append(f)
            for idx, w, why, ct in reversed(applied):
                items.insert(idx, ('i', f"s_nop {w-1}"))
                total_nops += 1
                if verbose:
                    print(f"[hazard {self.name}] s_nop {w-1} before '{ct}' (producer '{why}')")
        self.final = items
        return items

    def text(self):
        out = [f".globl {self.name}", ".p2align 8", f".type {self.name},@function", f"{self.name}:"]
        for it in self.final:
            if it[0] == 'l':
                out.append(it[1] + ":")
            else:
                out.append("    " + it[1])
        return "\n".join(out)

    def stats(self):
        from collections import Counter
        c = Counter()
        for it in self.final:
            if it[0] == 'i':
                c[Ins(it[1]).cls] += 1
        return dict(c)


def descriptor(name, vgpr, sgpr, accum):
    return "\n".join([
        ".p2align 6",
        f".amdhsa_kernel {name}",
        f"  .amdhsa_next_free_vgpr {vgpr}",
        f"  .amdhsa_next_free_sgpr {sgpr}",
        f"  .amdhsa_accum_offset {accum}",
        "  .amdhsa_group_segment_fixed_size 0",
        "  .amdhsa_kernarg_size 96",
        "  .amdhsa_user_sgpr_count 2",
        "  .amdhsa_user_sgpr_kernarg_segment_ptr 1",
        "  .amdhsa_system_sgpr_workgroup_id_x 1",
        ".end_amdhsa_kernel"])


def build_file(header, kernels):
    out = [header.rstrip("\n")] if header else []
    for k, v, s, a, g, b, lds in kernels:
        out.append(f"; @launch kernel={k.name} grid=({g},1,1) block=({b},1,1) lds={lds}")
    out.append('.amdgcn_target "amdgcn-amd-amdhsa--gfx950"')
    out.append(".text")
    for k, *_ in kernels:
        out.append(k.text())
    out.append('.section .rodata,"a"')
    for k, v, s, a, g, b, lds in kernels:
        out.append(descriptor(k.name, v, s, a))
    return "\n".join(out) + "\n"
```

```python
import sys, math, struct
sys.path.insert(0, "tools")
from kgen import *

MB = 1 << 20
XN_OFF = 0
OF_OFF = 4 * MB
HF_OFF = 20 * MB
EX_OFF = 36 * MB
FL_OFF = 40 * MB
TS_OFF = 48 * MB
WS_BYTES = 256 * MB

A_X, A_K, A_V, A_WQ, A_WO, A_BX, A_WG, A_WU, A_WD, A_OUT, A_DBG, A_WS = [8 * i for i in range(12)]
M16 = "v_mfma_f32_16x16x32_bf16"
M32 = "v_mfma_f32_32x32x16_bf16"
LOG2E = math.log2(math.e)


def f32bits(x):
    return struct.unpack("<I", struct.pack("<f", x))[0]


def srd(k, d, lo, hi, nbytes):
    k(f"s_mov_b32 s{d}, s{lo}")
    k(f"s_and_b32 s{d+1}, s{hi}, 0xffff")
    k(f"s_mov_b32 s{d+2}, {nbytes}")
    k(f"s_mov_b32 s{d+3}, 0x20000")


class Prof:
    def __init__(self, k, on, base, kid):
        self.k, self.on, self.base, self.n, self.kid = k, on, base, 0, kid

    def stamp(self):
        if not self.on:
            return
        k = self.k
        if self.n == 0:
            k(f"s_memrealtime s[100:101]")
            k("s_waitcnt lgkmcnt(0)")
            k(f"s_mov_b32 s{self.base + 14}, s100")
        k(f"s_memtime s[100:101]")
        k("s_waitcnt lgkmcnt(0)")
        k(f"s_mov_b32 s{self.base + self.n}, s100")
        self.n += 1

    def dump(self, sws, swave, vtmp):
        if not self.on:
            return
        k = self.k
        k(f"s_memrealtime s[100:101]")
        k("s_waitcnt lgkmcnt(0)")
        k(f"s_mov_b32 s{self.base + 15}, s100")
        k(f"s_lshl_b32 s100, s2, 2")
        k(f"s_add_u32 s100, s100, s{swave}")
        k(f"s_lshl_b32 s100, s100, 6")
        k(f"s_add_u32 s100, s100, {TS_OFF + self.kid * 65536 * 4}")
        k(f"v_mov_b32 v{vtmp}, 0")
        for i in list(range(self.n)) + [14, 15]:
            k(f"v_mov_b32 v{vtmp+1}, s{self.base+i}")
            k(f"buffer_store_dword v{vtmp+1}, v{vtmp}, s[{sws}:{sws+3}], s100 offen offset:{4*i}")
            k("s_nop 1")


def gen_ln():
    k = Kern("ln_kernel")
    k("s_cmp_ge_u32 s2, 256")
    k("s_cbranch_scc1 ln_end")
    k(f"s_load_dwordx2 s[4:5], s[0:1], {A_X}")
    k(f"s_load_dwordx2 s[6:7], s[0:1], {A_WS}")
    k("v_and_b32 v1, 63, v0")
    k("v_lshrrev_b32 v2, 6, v0")
    k("v_lshrrev_b32 v3, 3, v1")
    k("v_and_b32 v4, 7, v1")
    k("v_lshl_add_u32 v5, v2, 3, v4")
    k("v_lshlrev_b32 v6, 11, v3")
    k("v_lshl_add_u32 v6, v5, 4, v6")
    k("s_lshl_b32 s3, s2, 14")
    k("s_waitcnt lgkmcnt(0)")
    srd(k, 8, 4, 5, 4 * MB)
    srd(k, 12, 6, 7, WS_BYTES)
    k("buffer_load_dwordx4 v[8:11], v6, s[8:11], s3 offen", tag="x")
    k("v_lshrrev_b32 v7, 2, v5")
    k("v_lshlrev_b32 v7, 10, v7")
    k("v_and_b32 v12, 1, v5")
    k("v_lshl_add_u32 v7, v12, 9, v7")
    k("v_bfe_u32 v12, v5, 1, 1")
    k("v_lshl_add_u32 v7, v12, 8, v7")
    k("v_lshl_add_u32 v7, v3, 4, v7")
    k("v_cmp_eq_u32 s[22:23], 1, v12")
    k("s_lshr_b32 s16, s2, 1")
    k("s_lshl_b32 s16, s16, 15")
    k("s_and_b32 s17, s2, 1")
    k("s_lshl_b32 s17, s17, 7")
    k("s_add_u32 s16, s16, s17")
    k(f"s_add_u32 s16, s16, {XN_OFF}")
    k("v_lshlrev_b32 v13, 6, v3")
    k("v_lshl_add_u32 v14, v2, 2, v13")
    k("s_cmp_ge_u32 s2, 128")
    k("s_cbranch_scc1 ln_noz")
    k("v_cmp_gt_u32 vcc, 8, v0")
    k("s_and_saveexec_b64 s[18:19], vcc")
    k("s_cbranch_execz ln_noz2")
    k("v_lshlrev_b32 v15, 7, v0")
    k("v_mov_b32 v16, 0")
    k("s_lshl_b32 s20, s2, 10")
    k(f"s_add_u32 s20, s20, {FL_OFF}")
    k("buffer_store_dword v16, v15, s[12:15], s20 offen")
    k.label("ln_noz2")
    k("s_mov_b64 exec, s[18:19]")
    k.label("ln_noz")
    k("s_waitcnt vmcnt(0)")
    for i in range(4):
        k(f"v_lshlrev_b32 v{16+2*i}, 16, v{8+i}")
        k(f"v_and_b32 v{17+2*i}, 0xffff0000, v{8+i}")

    def red8(src):
        k(f"v_add_f32 v24, {src[0]}, {src[1]}")
        k(f"v_add_f32 v25, {src[2]}, {src[3]}")
        k(f"v_add_f32 v26, {src[4]}, {src[5]}")
        k(f"v_add_f32 v27, {src[6]}, {src[7]}")
        k("v_add_f32 v24, v24, v25")
        k("v_add_f32 v26, v26, v27")
        k("v_add_f32 v24, v24, v26")
        k("v_add_f32_dpp v24, v24, v24 quad_perm:[1,0,3,2] row_mask:0xf bank_mask:0xf")
        k("v_add_f32_dpp v24, v24, v24 quad_perm:[2,3,0,1] row_mask:0xf bank_mask:0xf")
        k("v_add_f32_dpp v24, v24, v24 row_half_mirror row_mask:0xf bank_mask:0xf")

    def xwave(off):
        k(f"ds_write_b32 v14, v24 offset:{off}")
        k("s_waitcnt lgkmcnt(0)")
        k("s_barrier")
        for i in range(4):
            k(f"ds_read_b128 v[{28+4*i}:{31+4*i}], v13 offset:{off+16*i}")
        k("s_waitcnt lgkmcnt(0)")
        for i in range(8):
            k(f"v_add_f32 v{28+i}, v{28+i}, v{36+i}")
        for i in range(4):
            k(f"v_add_f32 v{28+i}, v{28+i}, v{32+i}")
        k("v_add_f32 v28, v28, v29")
        k("v_add_f32 v30, v30, v31")
        k("v_add_f32 v24, v28, v30")

    red8([f"v{16+i}" for i in range(8)])
    xwave(0)
    k(f"v_mul_f32 v44, {f32bits(1.0/1024):#x}, v24")
    for i in range(8):
        k(f"v_sub_f32 v{48+i}, v{16+i}, v44")
    for i in range(8):
        k(f"v_mul_f32 v{48+i}, v{48+i}, v{48+i}")
    red8([f"v{48+i}" for i in range(8)])
    xwave(512)
    k(f"v_mul_f32 v45, {f32bits(1.0/1024):#x}, v24")
    k("v_cvt_pk_bf16_f32 v46, v44, v45")
    k("v_lshlrev_b32 v44, 16, v46")
    k("v_and_b32 v45, 0xffff0000, v46")
    k(f"v_add_f32 v45, {f32bits(1e-5):#x}, v45")
    k("v_cvt_pk_bf16_f32 v45, v45, v45")
    k("v_and_b32 v45, 0xffff0000, v45")
    k("v_sqrt_f32 v45, v45")
    k("v_cvt_pk_bf16_f32 v45, v45, v45")
    k("v_and_b32 v45, 0xffff0000, v45")
    k("v_rcp_f32 v45, v45")
    for i in range(8):
        k(f"v_sub_f32 v{16+i}, v{16+i}, v44")
    for i in range(4):
        k(f"v_cvt_pk_bf16_f32 v{8+i}, v{16+2*i}, v{17+2*i}")
    for i in range(4):
        k(f"v_lshlrev_b32 v{16+2*i}, 16, v{8+i}")
        k(f"v_and_b32 v{17+2*i}, 0xffff0000, v{8+i}")
    for i in range(8):
        k(f"v_mul_f32 v{16+i}, v{16+i}, v45")
    for i in range(4):
        k(f"v_cvt_pk_bf16_f32 v{8+i}, v{16+2*i}, v{17+2*i}")
    k("v_cndmask_b32 v16, v10, v8, s[22:23]")
    k("v_cndmask_b32 v17, v11, v9, s[22:23]")
    k("v_mov_b32_dpp v18, v16 quad_perm:[2,3,0,1] row_mask:0xf bank_mask:0xf")
    k("v_mov_b32_dpp v19, v17 quad_perm:[2,3,0,1] row_mask:0xf bank_mask:0xf")
    k("v_cndmask_b32 v20, v8, v18, s[22:23]")
    k("v_cndmask_b32 v21, v9, v19, s[22:23]")
    k("v_cndmask_b32 v22, v18, v10, s[22:23]")
    k("v_cndmask_b32 v23, v19, v11, s[22:23]")
    k("buffer_store_dwordx4 v[20:23], v7, s[12:15], s16 offen")
    k.label("ln_end")
    k("s_endpgm")
    k.finalize(verbose=False)
    return (k, 64, 32, 64, 256, 1024, 1024)


def spread(ops, nslots):
    cost = lambda o: 8 if o.startswith("v_exp") else 4
    tot = sum(cost(o) for o in ops)
    res = [[] for _ in range(nslots)]
    accu = 0
    for o in ops:
        idx = min(nslots - 1, int((accu + cost(o) / 2) * nslots / tot))
        res[idx].append(o)
        accu += cost(o)
    return res


GOFF = 16384
UOFF = GOFF + 14336
SS = UOFF + 14336
KVR = 4224
KVS = 4 * KVR
QSCALE = LOG2E / math.sqrt(128.0)
THR = float(2 ** 20)


def gen_p1(prof=False, RA=4, verbose=False):
    k = Kern("p1_kernel")
    P = Prof(k, prof, 80, 1)
    sWS, sWQ, sGU, sK, sV = 8, 12, 16, 20, 24
    s_aoff, s_aoff2, s_qoff, s_goff, s_rd, s_wr, s_cQ, s_cG, s_cG2, s_cnt, s_w, s_i, s_j = range(28, 41)
    s_kv, s_kvw, s_cK = 41, 42, 43
    sH = [44, 45, 46, 47]
    sO = [48, 49]
    s_c = 52
    s_thr = 54
    s_kvrd = 58
    t0, t1, t2, t3 = 60, 61, 62, 63
    vQrd, vGrd = [1, 2], 3
    vQrd0, vGrd0 = [4, 5], 6
    vA = [7, 8]
    vDQ = [9, 10, 11, 12]
    vDG = list(range(13, 20))
    vL16 = 20
    vDK = [21, 22]
    vDV = 23
    vKa0 = [24, 25, 26, 27]
    vVa0 = 28
    vHx = 29
    vOs = 30
    vt = [32, 33, 34, 35, 36]
    GA = [[Reg('v', 32 + 32 * t + 4 * tb, 4) for tb in range(4)] for t in range(7)]
    UA = [[Reg('v', 32 + 32 * t + 16 + 4 * tb, 4) for tb in range(4)] for t in range(7)]
    QA = [[Reg('a', 16 * c + 4 * tb, 4) for tb in range(4)] for c in range(8)]
    ACT = [[Reg('a', 128 + 16 * s + 4 * tb, 4) for tb in range(4)] for s in range(4)]
    WR = [Reg('a', 192 + 4 * i, 4) for i in range(8)]

    def acc(ct, tb):
        if ct < 8:
            return QA[ct][tb]
        t, up = divmod(ct - 8, 2)
        return (UA if up else GA)[t][tb]

    k("s_cmp_ge_u32 s2, 256")
    k("s_cbranch_scc1 p1_end")
    k(f"s_load_dwordx4 s[64:67], s[0:1], {A_K}")
    k(f"s_load_dwordx2 s[68:69], s[0:1], {A_WQ}")
    k(f"s_load_dwordx4 s[72:75], s[0:1], {A_WG}")
    k(f"s_load_dwordx2 s[70:71], s[0:1], {A_WS}")
    a, b, c, d, e = vt
    k(f"v_lshrrev_b32 v{a}, 6, v0")
    k(f"v_and_b32 v0, 63, v0")
    k(f"v_readfirstlane_b32 s{s_w}, v{a}")
    k(f"s_and_b32 s{t0}, s2, 7")
    k(f"s_lshr_b32 s{t1}, s2, 3")
    k(f"s_and_b32 s{t1}, s{t1}, 3")
    k(f"s_lshl_b32 s{s_j}, s{t0}, 2")
    k(f"s_add_u32 s{s_j}, s{s_j}, s{t1}")
    k(f"s_lshr_b32 s{s_i}, s2, 5")
    k(f"v_lshlrev_b32 v{vL16}, 4, v0")
    k(f"v_bfe_u32 v{a}, v0, 2, 2")
    k(f"v_lshrrev_b32 v{b}, 4, v0")
    k(f"v_and_b32 v{c}, 3, v0")
    k(f"v_lshlrev_b32 v{d}, 6, v{b}")
    k(f"v_lshl_add_u32 v{d}, v{c}, 4, v{d}")
    k(f"v_lshl_add_u32 v{vDQ[0]}, v{a}, 13, v{d}")
    k(f"s_lshl_b32 s{t1}, s{s_j}, 8")
    k(f"s_lshl_b32 s{t2}, s{s_w}, 17")
    k(f"s_add_u32 s{t1}, s{t1}, s{t2}")
    k(f"v_add_u32 v{vDQ[0]}, s{t1}, v{vDQ[0]}")
    k(f"v_xor_b32 v{e}, 32, v{vDQ[0]}")
    k(f"v_add_u32 v{vDQ[1]}, {1*(32768-1024)}, v{e}")
    k(f"v_add_u32 v{vDQ[2]}, {2*(32768-1024)}, v{vDQ[0]}")
    k(f"v_add_u32 v{vDQ[3]}, {3*(32768-1024)}, v{e}")
    k(f"v_lshl_add_u32 v{vDV}, v{a}, 8, v{d}")
    k(f"s_lshl_b32 s{t3}, s{s_w}, 11")
    k(f"v_add_u32 v{vDV}, s{t3}, v{vDV}")
    for e_ in range(2):
        k(f"v_add_u32 v{a}, {4*e_}, v{b}")
        k(f"v_and_b32 v{c}, 15, v0")
        k(f"v_xor_b32 v{c}, v{c}, v{a}")
        k(f"v_lshlrev_b32 v{c}, 4, v{c}")
        k(f"v_lshl_add_u32 v{vDK[e_]}, v{b}, 8, v{c}")
        k(f"v_add_u32 v{vDK[e_]}, s{t3}, v{vDK[e_]}")
    k(f"s_and_b32 s{t2}, s{s_w}, 1")
    k(f"s_mul_i32 s{t2}, s{t2}, {32*7168}")
    k(f"s_mul_i32 s{t0}, s{s_j}, 192")
    k(f"s_add_u32 s{t0}, s{t0}, s{t2}")
    k(f"s_lshl_b32 s{t1}, s{s_j}, 5")
    k(f"s_add_u32 s{t1}, s{t1}, s{t2}")
    k(f"s_add_u32 s{t1}, s{t1}, {6144-192}")
    k(f"v_mov_b32 v{d}, s{t0}")
    k(f"v_mov_b32 v{e}, s{t1}")
    k(f"s_mov_b32 s{t3}, 4682")
    for q in range(7):
        k(f"v_add_u32 v{a}, {64*q}, v0")
        k(f"v_mul_u32_u24 v{b}, s{t3}, v{a}")
        k(f"v_lshrrev_b32 v{b}, 16, v{b}")
        k(f"v_mul_u32_u24 v{c}, 14, v{b}")
        k(f"v_sub_u32 v{c}, v{a}, v{c}")
        k(f"v_cmp_gt_u32 vcc, 12, v{c}")
        k(f"v_mul_u32_u24 v{b}, 7168, v{b}")
        k(f"v_lshl_add_u32 v{b}, v{c}, 4, v{b}")
        k(f"v_cndmask_b32 v{a}, v{e}, v{d}, vcc")
        k(f"v_add_u32 v{b}, v{a}, v{b}")
        k(f"v_subrev_u32 v{vDG[q]}, {(q % 4)*1024}, v{b}")
    k(f"s_lshl_b32 s{s_cQ}, s{s_w}, 12")
    k(f"s_mul_i32 s{s_cG}, s{s_w}, 7168")
    k(f"s_add_u32 s{s_cG}, s{s_cG}, {GOFF}")
    k(f"s_add_u32 s{s_cG2}, s{s_cG}, 4096")
    k(f"s_mul_i32 s{s_cK}, s{s_w}, {KVR}")
    k(f"s_lshl_b32 s{t0}, s{s_i}, 4")
    k(f"s_lshl_b32 s{t1}, s{s_w}, 2")
    k(f"s_add_u32 s{t0}, s{t0}, s{t1}")
    k(f"s_lshl_b32 s{t1}, s{t0}, 15")
    k(f"v_add_u32 v{vA[0]}, s{t1}, v{vL16}")
    k(f"v_add_u32 v{vA[1]}, 0x8000, v{vA[0]}")
    k("s_waitcnt lgkmcnt(0)")
    srd(k, sWS, 70, 71, WS_BYTES)
    srd(k, sWQ, 68, 69, 8 * MB)
    k(f"s_cmp_ge_u32 s{s_w}, 2")
    k(f"s_cselect_b32 s72, s74, s72")
    k(f"s_cselect_b32 s73, s75, s73")
    srd(k, sGU, 72, 73, 1024 * 7168)
    P.stamp()

    def dma_group(n, grp):
        out = []
        if grp == 0:
            out.append((f"s_add_u32 m0, s{s_wr}, s{s_cQ}", None))
            for q in range(4):
                out.append((f"buffer_load_dwordx4 v{vDQ[q]}, s[{sWQ}:{sWQ+3}], s{s_qoff} offen offset:{q*1024} lds", ('W', n)))
            out.append((f"s_add_u32 s{s_qoff}, s{s_qoff}, {64*8192}", None))
        elif grp == 1:
            out.append((f"s_add_u32 m0, s{s_wr}, s{s_cG}", None))
            for q in range(4):
                out.append((f"buffer_load_dwordx4 v{vDG[q]}, s[{sGU}:{sGU+3}], s{s_goff} offen offset:{q*1024} lds", ('W', n)))
        else:
            out.append((f"s_add_u32 m0, s{s_wr}, s{s_cG2}", None))
            for q in range(4, 7):
                out.append((f"buffer_load_dwordx4 v{vDG[q]}, s[{sGU}:{sGU+3}], s{s_goff} offen offset:{(q-4)*1024} lds", ('W', n)))
            out.append((f"s_add_u32 s{s_goff}, s{s_goff}, {64*7168}", None))
        return out

    def act_load(step, tb):
        return (f"buffer_load_dwordx4 {ACT[step % 4][tb]}, v{vA[tb & 1]}, s[{sWS}:{sWS+3}], s{s_aoff2 if tb >> 1 else s_aoff} offen offset:{(step % 4)*1024}",
                ('A', step % 4, tb))

    def kv_dma(kb):
        return [(f"s_add_u32 m0, s{s_kvw}, s{s_cK}", None),
                (f"buffer_load_dwordx4 v{vDK[0]}, s[{sK}:{sK+3}], s{s_kv} offen lds", ('KV', kb)),
                (f"buffer_load_dwordx4 v{vDK[1]}, s[{sK}:{sK+3}], s{s_kv} offen offset:1024 lds", ('KV', kb)),
                (f"buffer_load_dwordx4 v{vDV}, s[{sV}:{sV+3}], s{s_kv} offen offset:2048 lds", ('KV', kb)),
                (f"buffer_load_dwordx4 v{vDV}, s[{sV}:{sV+3}], s{s_kv} offen offset:3072 lds", ('KV', kb)),
                (f"s_add_u32 s{s_kv}, s{s_kv}, 8192", None),
                (f"s_add_u32 s{s_kvw}, s{s_kvw}, {KVS}", None),
                (f"s_cmp_eq_u32 s{s_kvw}, {8*KVS}", None),
                (f"s_cselect_b32 s{s_kvw}, 0, s{s_kvw}", None)]

    def wread(F):
        f = F % 44
        ks, ct = divmod(f, 22)
        dst = WR[F % 8]
        res = []
        for e_ in range(2):
            if ct < 8:
                res.append((f"ds_read_b64_tr_b16 {dst[2*e_:2*e_+2]}, v{vQrd[ct & 1]} offset:{ks*8192 + e_*4096 + (ct >> 1)*256}", ('WF', F % 8)))
            else:
                t, up = divmod(ct - 8, 2)
                res.append((f"ds_read_b64_tr_b16 {dst[2*e_:2*e_+2]}, v{vGrd} offset:{ks*7168 + e_*3584 + t*32 + up*14336}", ('WF', F % 8)))
        return res

    def em(lst):
        for t_, tag in lst:
            k(t_, tag=tag)

    k(f"s_mov_b32 s{s_qoff}, 0")
    k(f"s_mov_b32 s{s_goff}, 0")
    k(f"s_mov_b32 s{s_aoff}, {XN_OFF}")
    k(f"s_mov_b32 s{s_aoff2}, {XN_OFF + 0x10000}")
    k(f"s_mov_b32 s{s_wr}, {2*SS}")
    for g in range(3):
        em(dma_group(0, g))
    for s in range(2):
        em([act_load(s, tb) for tb in range(4)])
    k(f"s_mov_b32 s{s_wr}, 0")
    for g in range(3):
        em(dma_group(1, g))
    em([act_load(2, tb) for tb in range(4)])
    k(f"s_lshr_b32 s{t1}, s{s_j}, 3")
    k(f"s_lshl_b32 s{t1}, s{t1}, 19")
    k(f"s_add_u32 s{t1}, s{t1}, {1536*256}")
    k(f"s_add_u32 s64, s64, s{t1}")
    k(f"s_addc_u32 s65, s65, 0")
    srd(k, sK, 64, 65, 512 * 256)
    k(f"s_sub_u32 s{t1}, s{t1}, 2048")
    k(f"s_add_u32 s66, s66, s{t1}")
    k(f"s_addc_u32 s67, s67, 0")
    srd(k, sV, 66, 67, 512 * 256 + 2048)
    k(f"s_mov_b32 s{s_kv}, 0")
    k(f"s_mov_b32 s{s_kvw}, 0")
    k(f"s_mul_i32 s{t1}, s{t0}, {112*1024}")
    k(f"s_mul_i32 s{t2}, s{s_j}, 3072")
    k(f"s_add_u32 s{t1}, s{t1}, s{t2}")
    k(f"s_add_u32 s{sH[0]}, s{t1}, {HF_OFF}")
    for tb in range(1, 4):
        k(f"s_add_u32 s{sH[tb]}, s{sH[tb-1]}, {112*1024}")
    k(f"s_lshr_b32 s{t1}, s{s_j}, 1")
    k(f"s_add_u32 s{t1}, s{t1}, 96")
    k(f"s_lshl_b32 s{t1}, s{t1}, 10")
    k(f"s_sub_u32 s{t1}, s{t1}, s{t2}")
    k(f"s_and_b32 s{t2}, s{s_j}, 1")
    k(f"s_lshl_b32 s{t2}, s{t2}, 3")
    k(f"s_add_u32 s{t1}, s{t1}, s{t2}")
    k(f"v_add_u32 v{vHx}, s{t1}, v{vL16}")
    k(f"s_lshl_b32 s{t1}, s{t0}, 17")
    k(f"s_lshl_b32 s{t2}, s{s_j}, 12")
    k(f"s_add_u32 s{t1}, s{t1}, s{t2}")
    k(f"s_add_u32 s{sO[0]}, s{t1}, {OF_OFF}")
    k(f"s_add_u32 s{sO[1]}, s{sO[0]}, {256*1024}")
    k(f"v_and_b32 v{a}, 15, v0")
    k(f"v_bfe_u32 v{b}, v0, 4, 1")
    k(f"v_lshrrev_b32 v{d}, 5, v0")
    k(f"v_lshlrev_b32 v{vOs}, 4, v{a}")
    k(f"v_lshl_add_u32 v{vOs}, v{d}, 8, v{vOs}")
    k(f"v_lshl_add_u32 v{vOs}, v{b}, 17, v{vOs}")
    k(f"v_bfe_u32 v{c}, v0, 2, 2")
    k(f"v_and_b32 v{a}, 3, v0")
    k(f"v_lshrrev_b32 v{e}, 4, v0")
    k(f"v_lshlrev_b32 v{vQrd0[0]}, 3, v{a}")
    k(f"v_lshl_add_u32 v{vQrd0[0]}, v{c}, 6, v{vQrd0[0]}")
    k(f"v_lshl_add_u32 v{vQrd0[0]}, v{e}, 10, v{vQrd0[0]}")
    k(f"v_lshl_add_u32 v{vQrd0[0]}, v{b}, 5, v{vQrd0[0]}")
    k(f"v_xor_b32 v{vQrd0[1]}, 32, v{vQrd0[0]}")
    k(f"v_lshl_add_u32 v{e}, v{e}, 2, v{c}")
    k(f"v_mul_u32_u24 v{e}, 224, v{e}")
    k(f"v_lshl_add_u32 v{e}, v{a}, 3, v{e}")
    k(f"v_add_u32 v{vGrd0}, {GOFF}, v{e}")
    k(f"v_and_b32 v{e}, 1, v0")
    k(f"v_lshl_add_u32 v{e}, v{b}, 1, v{e}")
    k(f"v_bfe_u32 v{a}, v0, 1, 1")
    k(f"v_lshl_add_u32 v{e}, v{a}, 2, v{e}")
    k(f"v_lshlrev_b32 v{e}, 3, v{e}")
    k(f"v_lshl_add_u32 v{e}, v{c}, 6, v{e}")
    k(f"v_lshl_add_u32 v{e}, v{d}, 10, v{e}")
    k(f"v_add_u32 v{vVa0}, 2048, v{e}")
    k(f"v_bfe_u32 v{a}, v0, 3, 2")
    k(f"v_mul_u32_u24 v{a}, {KVR}, v{a}")
    k(f"v_and_b32 v{b}, 7, v0")
    k(f"v_lshl_add_u32 v{a}, v{b}, 8, v{a}")
    for s3 in range(4):
        k(f"v_add_u32 v{c}, {2*s3}, v{d}")
        k(f"v_xor_b32 v{c}, v{c}, v{b}")
        k(f"v_lshl_add_u32 v{vKa0[s3]}, v{c}, 4, v{a}")
    k(f"s_mov_b32 s{s_wr}, {SS}")
    k(f"s_mov_b32 s{s_rd}, {2*SS}")
    for h_ in range(2):
        k(f"v_add_u32 v{vQrd[h_]}, s{s_rd}, v{vQrd0[h_]}")
    k(f"v_add_u32 v{vGrd}, s{s_rd}, v{vGrd0}")
    for r in range(32, 256, 2):
        k(f"v_mov_b64 v[{r}:{r+1}], 0")
    for r in range(128):
        k(f"v_accvgpr_write_b32 a{r}, 0")
    k(f"s_mov_b32 s{s_c}, {f32bits(QSCALE):#x}")
    k(f"s_mov_b32 s{s_c+1}, {f32bits(QSCALE):#x}")
    k.need(vm=[('W', 0)])
    k("s_barrier")
    P.stamp()
    for F in range(RA):
        em(wread(F))

    def stage(n):
        fill = [[[] for _ in range(4)] for _ in range(44)]
        BP = 43 - RA + 2
        for p in range(44):
            if p + RA <= 43:
                r = wread(n * 44 + p + RA)
                fill[p][0].append(r[0]); fill[p][1].append(r[1])
        if n < 15:
            flat = [x for i in range(RA) for x in wread((n + 1) * 44 + i)]
            slots = [(p, m) for p in range(BP + 1, 44) for m in range(4)]
            assert len(flat) <= len(slots)
            for x, (p, m) in zip(flat, slots):
                fill[p][m].append(x)
        if n + 2 <= 15:
            seq = dma_group(n + 2, 0) + dma_group(n + 2, 1) + dma_group(n + 2, 2)
        elif n == 14:
            seq = kv_dma(0) + kv_dma(1)
        else:
            seq = kv_dma(2) + kv_dma(3) + kv_dma(4)
        p = 0
        for x in seq:
            if x[0].startswith("buffer"):
                fill[p][3].append(x); p += 2
            else:
                fill[min(p, 43)][2].append(x)
        for ks in range(2):
            step = 2 * n + ks + 3
            if step <= 31:
                for tb in range(4):
                    fill[22 * ks + 1 + 2 * tb][3].append(act_load(step, tb))
                if step % 4 == 3:
                    fill[22 * ks + 9][2].append((f"s_add_u32 s{s_aoff}, s{s_aoff}, 4096", None))
                    fill[22 * ks + 11][2].append((f"s_add_u32 s{s_aoff2}, s{s_aoff2}, 4096", None))
        for p in range(44):
            ks, ct = divmod(p, 22)
            F = n * 44 + p
            step = 2 * n + ks
            order = (0, 1, 2, 3) if p % 2 == 0 else (3, 2, 1, 0)
            k.need(vm=[('A', step % 4, tb) for tb in range(4)] if ct == 0 else [], lg=[('WF', F % 8)])
            for m, tb in enumerate(order):
                k(f"{M16} {acc(ct,tb)}, {WR[F % 8]}, {ACT[step % 4][tb]}, {acc(ct,tb)}")
                em(fill[p][m])
            if p == BP:
                k(f"s_mov_b32 s{s_wr}, s{s_rd}")
                k(f"s_add_u32 s{s_rd}, s{s_rd}, {SS}")
                k(f"s_cmp_eq_u32 s{s_rd}, {3*SS}")
                k(f"s_cselect_b32 s{s_rd}, 0, s{s_rd}")
                for h_ in range(2):
                    k(f"v_add_u32 v{vQrd[h_]}, s{s_rd}, v{vQrd0[h_]}")
                k(f"v_add_u32 v{vGrd}, s{s_rd}, v{vGrd0}")
                k.need(vm=[('W', n + 1)] if n < 15 else [('KV', 1)], lg=[('WF', (n * 44 + 43) % 8)])
                k("s_barrier")

    k(f"s_mov_b32 s{s_cnt}, 7")
    for it in range(7):
        k.loop_iter("g1", it)
        k.label("p1_gloop")
        stage(2 * it)
        stage(2 * it + 1)
        k(f"s_sub_u32 s{s_cnt}, s{s_cnt}, 1")
        k(f"s_cmp_lg_u32 s{s_cnt}, 0")
        k("s_cbranch_scc1 p1_gloop")
    k.loop_end("g1")
    stage(14)
    stage(15)
    P.stamp()
    em(kv_dma(5)); em(kv_dma(6)); em(kv_dma(7))
    for t in range(7):
        for tb in range(4):
            G_, U_ = GA[t][tb], UA[t][tb]
            k(f"v_pk_mul_f32 {G_[0:2]}, {G_[0:2]}, {U_[0:2]}")
            k(f"v_pk_mul_f32 {G_[2:4]}, {G_[2:4]}, {U_[2:4]}")
            D_ = UA[t & ~1][tb]
            k(f"v_cvt_pk_bf16_f32 {D_[2*(t & 1)]}, {G_[0]}, {G_[1]}")
            k(f"v_cvt_pk_bf16_f32 {D_[2*(t & 1)+1]}, {G_[2]}, {G_[3]}")
            if t & 1:
                k(f"buffer_store_dwordx4 {D_}, v{vL16}, s[{sWS}:{sWS+3}], s{sH[tb]} offen offset:{(t >> 1)*1024}")
            elif t == 6:
                k(f"buffer_store_dwordx2 {D_[0:2]}, v{vHx}, s[{sWS}:{sWS+3}], s{sH[tb]} offen")
    O = [[Reg('v', 32 + 16 * (2 * db + tb), 16) for tb in range(2)] for db in range(4)]
    S = [Reg('v', 160 + 16 * tb, 16) for tb in range(2)]
    NM = [Reg('v', 192 + 16 * tb, 16) for tb in range(2)]
    PF = [Reg('v', 224 + 8 * tb, 8) for tb in range(2)]
    EX = [Reg('v', 240 + i) for i in range(8)]
    TS = [Reg('v', 248), Reg('v', 249)]
    L = [Reg('v', 250), Reg('v', 251)]
    X1, X2 = Reg('v', 252), Reg('v', 253)
    X12 = Reg('v', 252, 2)
    vKa = [1, 2, 3, 4]
    vVa = 5
    QF = [[Reg('a', 128 + 32 * tb + 4 * s, 4) for s in range(8)] for tb in range(2)]
    KF = [Reg('a', 192 + 4 * s, 4) for s in range(8)]
    VF = [[Reg('a', 224 + 8 * db + 4 * u, 4) for u in range(2)] for db in range(4)]

    def kread(s, slot_imm):
        return (f"ds_read_b128 {KF[s]}, v{vKa[s & 3]} offset:{slot_imm + (s >> 2)*128}", ('KF', s))

    def vread(db, u, e_, slot_imm):
        return (f"ds_read_b64_tr_b16 {VF[db][u][2*e_:2*e_+2]}, v{vVa} offset:{slot_imm + (2*u+e_)*KVR + db*256}", ('VF', db, u))

    for s3 in range(4):
        k(f"v_mov_b32 v{vKa[s3]}, v{vKa0[s3]}")
    k(f"v_mov_b32 v{vVa}, v{vVa0}")
    for s in range(8):
        em([kread(s, 0)])
    for db in range(4):
        for u in range(2):
            em([vread(db, u, 0, 0), vread(db, u, 1, 0)])
    for dt in range(8):
        TQ = Reg('v', 32 + 16 * (dt & 1), 16)
        for tb in range(4):
            for r in range(4):
                k(f"v_accvgpr_read_b32 {TQ[4*tb+r]}, {QA[dt][tb][r]}")
        for r in range(0, 16, 2):
            k(f"v_pk_mul_f32 {TQ[r:r+2]}, {TQ[r:r+2]}, s[{s_c}:{s_c+1}]")
        for r in range(8):
            k(f"v_cvt_pk_bf16_f32 {TQ[r]}, {TQ[2*r]}, {TQ[2*r+1]}")
        for tb32 in range(2):
            for r in range(2):
                k(f"v_permlane16_swap_b32 {TQ[4*tb32+r]}, {TQ[4*tb32+2+r]}")
        for tb32 in range(2):
            for r in range(4):
                k(f"v_accvgpr_write_b32 {QF[tb32][dt][r]}, {TQ[4*tb32+r]}")
    k(f"s_mov_b32 s{s_kvrd}, 0")
    k(f"s_mov_b32 s{s_thr}, {f32bits(THR):#x}")
    P.stamp()

    def fast_ops(tb, cmp=True):
        out, prev = [], []
        for r in range(0, 16, 2):
            e0, e1 = EX[r % 8], EX[(r + 1) % 8]
            out.append(f"v_exp_f32 {e0}, {S[tb][r]}")
            out += prev[:1]
            out.append(f"v_exp_f32 {e1}, {S[tb][r+1]}")
            out += prev[1:]
            if r == 0:
                prev = [f"v_add_f32 {TS[0]}, {e0}, {e1}", f"v_cvt_pk_bf16_f32 {PF[tb][r//2]}, {e0}, {e1}"]
            elif r == 2:
                prev = [f"v_add_f32 {TS[1]}, {e0}, {e1}", f"v_cvt_pk_bf16_f32 {PF[tb][r//2]}, {e0}, {e1}"]
            else:
                prev = [f"v_add_f32 {TS[0]}, {TS[0]}, {e0}", f"v_add_f32 {TS[1]}, {TS[1]}, {e1}",
                        f"v_cvt_pk_bf16_f32 {PF[tb][r//2]}, {e0}, {e1}"]
        out += prev
        out.append(f"v_add_f32 {TS[0]}, {TS[0]}, {TS[1]}")
        if cmp:
            out.append(f"v_cmp_lt_f32 vcc, s{s_thr}, {TS[0]}")
        return out

    def rowmax_ops(tb):
        T = S[tb]
        out = [f"v_max3_f32 {X1}, {T[0]}, {T[1]}, {T[2]}", f"v_max3_f32 {X2}, {T[3]}, {T[4]}, {T[5]}"]
        out += [f"v_max3_f32 {X1}, {X1}, {T[6]}, {T[7]}", f"v_max3_f32 {X2}, {X2}, {T[8]}, {T[9]}"]
        out += [f"v_max3_f32 {X1}, {X1}, {T[10]}, {T[11]}", f"v_max3_f32 {X2}, {X2}, {T[12]}, {T[13]}"]
        out += [f"v_max3_f32 {X1}, {X1}, {T[14]}, {T[15]}"]
        out += [f"v_max_f32 {X1}, {X1}, {X2}", f"v_mov_b32 {X2}, {X1}", "s_nop 1",
                f"v_permlane32_swap_b32 {X1}, {X2}", f"v_max_f32 {X1}, {X1}, {X2}"]
        return out

    def first_ops(tb):
        out = rowmax_ops(tb)
        out.append(f"v_sub_f32 {X1}, 0, {X1}")
        out.append(f"v_mov_b32 {X2}, {X1}")
        for r in range(0, 16, 2):
            out.append(f"v_pk_add_f32 {S[tb][r:r+2]}, {S[tb][r:r+2]}, {X12}")
        for r in range(0, 16, 2):
            out.append(f"v_mov_b64 {NM[tb][r:r+2]}, {X12}")
        return out

    slow = []

    def check(tb, par):
        lab = f"p1_slow{tb}_{par}"
        k(f"s_cbranch_vccnz {lab}")
        k.label(lab + "_ret")
        if (lab, tb) not in slow:
            slow.append((lab, tb))
        k(f"v_add_f32 {L[tb]}, {L[tb]}, {TS[0]}")

    def pv(tb, fills, first=False):
        i = 0
        for u in range(2):
            for db in range(4):
                k.need(lg=[('VF', db, u)])
                k(f"{M32} {O[db][tb]}, {VF[db][u]}, {PF[tb][4*u:4*u+4]}, {0 if (first and u == 0) else O[db][tb]}")
                fills(i, db, u)
                i += 1

    def kblock(n, par, tagp):
        first, last = n == 0, n == 15
        imm = par * KVS
        nimm = KVS if par == 0 else 0
        sm1 = spread(fast_ops(1), 15)
        sm0 = spread(fast_ops(0), 15)
        for s in range(8):
            k.need(lg=[('KF', s)])
            k(f"{M32} {S[0]}, {KF[s]}, {QF[0][s]}, {(0 if first else NM[0]) if s == 0 else S[0]}")
            if first:
                for r in range(0, 8, 2):
                    k(f"v_mov_b64 {O[s >> 1][1][8*(s & 1)+r:8*(s & 1)+r+2]}, 0")
            else:
                for o in sm1[7 + s]:
                    k(o)
        if not first:
            check(1, tagp)
            def f1(i, db, u):
                em([vread(db, u, 0, imm), vread(db, u, 1, imm)])
                if i >= 1:
                    for o in sm0[i - 1]:
                        k(o)
            pv(1, f1)
        if par == 1:
            k(f"s_add_u32 s{s_kvrd}, s{s_kvrd}, {2*KVS}")
            k(f"s_cmp_eq_u32 s{s_kvrd}, {8*KVS}")
            k(f"s_cselect_b32 s{s_kvrd}, 0, s{s_kvrd}")
            for s3 in range(4):
                k(f"v_add_u32 v{vKa[s3]}, s{s_kvrd}, v{vKa0[s3]}")
            k(f"v_add_u32 v{vVa}, s{s_kvrd}, v{vVa0}")
        if first:
            f0 = spread(first_ops(0) + fast_ops(0, cmp=False), 7)
            k.need(vm=[('KV', 2)])
            k("s_barrier")
        for s in range(8):
            k(f"{M32} {S[1]}, {KF[s]}, {QF[1][s]}, {(0 if first else NM[1]) if s == 0 else S[1]}")
            if not last:
                em([kread(s, nimm)])
            if first:
                if s >= 1:
                    for o in f0[s - 1]:
                        k(o)
            else:
                for o in sm0[7 + s]:
                    k(o)
        if first:
            k(f"v_mov_b32 {L[0]}, {TS[0]}")
            k(f"v_mov_b32 {L[1]}, 0")
        else:
            check(0, tagp)
        extra = []
        if par == 1 and not last:
            extra = kv_dma(n + 7) + kv_dma(n + 8)
        if first:
            f1_ = spread(first_ops(1) + [o for g in sm1[:7] for o in g], 7)
        def f3(i, db, u):
            if extra and i == 1:
                k.need(vm=[('KV', n + 3)], lg=[('VF', 3, 1), ('KF', 7)])
                k("s_barrier")
            if extra and i >= 2:
                em(extra[(i - 2) * 3:(i - 1) * 3])
            if i >= 1:
                for o in (f1_ if first else sm1)[i - 1]:
                    k(o)
        pv(0, f3, first=first)
        if last:
            for g in sm1[7:]:
                for o in g:
                    k(o)
            check(1, 3)
            pv(1, lambda i, db, u: None)

    kblock(0, 0, 9)
    k(f"s_mov_b32 s{s_cnt}, 7")
    for it in range(7):
        k.loop_iter("at", it)
        k.label("p1_aloop")
        kblock(2 * it + 1, 1, 1)
        kblock(2 * it + 2, 0, 0)
        k(f"s_sub_u32 s{s_cnt}, s{s_cnt}, 1")
        k(f"s_cmp_lg_u32 s{s_cnt}, 0")
        k("s_cbranch_scc1 p1_aloop")
    k.loop_end("at")
    kblock(15, 1, 2)
    P.stamp()
    for tb in range(2):
        k(f"v_mov_b32 {X2}, {L[tb]}")
        k(f"v_permlane32_swap_b32 {L[tb]}, {X2}")
        k(f"v_add_f32 {X1}, {L[tb]}, {X2}")
        k(f"v_rcp_f32 {X1}, {X1}")
        k(f"v_mov_b32 {X2}, {X1}")
        for db in range(4):
            A_ = O[db][tb]
            for r in range(0, 16, 2):
                k(f"v_pk_mul_f32 {A_[r:r+2]}, {A_[r:r+2]}, {X12}")
            for r in range(8):
                k(f"v_cvt_pk_bf16_f32 {A_[r]}, {A_[2*r]}, {A_[2*r+1]}")
            for cc in range(2):
                k(f"buffer_store_dwordx4 {A_[4*cc:4*cc+4]}, v{vOs}, s[{sWS}:{sWS+3}], s{sO[tb]} offen offset:{db*1024 + cc*512}")
    P.stamp()
    if prof:
        k("s_waitcnt vmcnt(0)")
        P.stamp()
        P.dump(sWS, s_w, 160)
    k.label("p1_end")
    k("s_endpgm")
    for lab, tb in slow:
        k.label(lab)
        for o in rowmax_ops(tb):
            k(o)
        k(f"v_max_f32 {X1}, 0, {X1}")
        k(f"v_sub_f32 {X1}, 0, {X1}")
        k(f"v_mov_b32 {X2}, {X1}")
        k(f"v_exp_f32 {EX[0]}, {X1}")
        for r in range(0, 16, 2):
            k(f"v_pk_add_f32 {S[tb][r:r+2]}, {S[tb][r:r+2]}, {X12}")
        for r in range(0, 16, 2):
            k(f"v_pk_add_f32 {NM[tb][r:r+2]}, {NM[tb][r:r+2]}, {X12}")
        k(f"v_mov_b32 {X1}, {EX[0]}")
        k(f"v_mov_b32 {X2}, {EX[0]}")
        k(f"v_mul_f32 {L[tb]}, {L[tb]}, {X1}")
        for db in range(4):
            for r in range(0, 16, 2):
                k(f"v_pk_mul_f32 {O[db][tb][r:r+2]}, {O[db][tb][r:r+2]}, {X12}")
        for o in fast_ops(tb, cmp=False):
            k(o)
        k(f"s_branch {lab}_ret")
    k.finalize(verbose=verbose)
    return (k, 512, 102, 256, 256, 256, 160 * 1024)


S2 = 32768


def gen_p2(prof=False, RA=2, verbose=False):
    k = Kern("p2_kernel")
    P = Prof(k, prof, 80, 2)
    sWS, sW, sX, sOUT = 8, 12, 16, 20
    s_role, s_ns, s_w, s_aoff, s_woff, s_woff2, s_rd, s_wr, s_cW, s_cW2, s_cnt, s_ex, s_fl, s_xo, s_tk, s_have = range(28, 44)
    t0, t1, t2, t3 = 60, 61, 62, 63
    vWrd, vWrd0 = [1, 2], [3, 4]
    vA = [5, 6]
    vDW = [7, 8, 9, 10]
    vL16, vZ, vXo, vOo, vTk, vFl = 11, 12, 13, 14, 15, 16
    a, b, c, d, e = 20, 21, 22, 23, 24
    ACC = [[Reg('v', 32 + 8 * c_ + 4 * tb, 4) for tb in range(2)] for c_ in range(8)]
    XR = [[Reg('v', 96 + 4 * c_ + 2 * tb, 2) for tb in range(2)] for c_ in range(8)]
    PB = Reg('v', 128, 32)
    T = [Reg('v', 160 + i) for i in range(16)]
    ACT = [[[Reg('a', 16 * u + 8 * kk + 4 * tb, 4) for tb in range(2)] for kk in range(2)] for u in range(8)]
    WR = [Reg('a', 128 + 4 * i, 4) for i in range(8)]

    k("s_cmp_ge_u32 s2, 256")
    k("s_cbranch_scc1 p2_end")
    k(f"s_load_dwordx2 s[64:65], s[0:1], {A_X}")
    k(f"s_load_dwordx2 s[66:67], s[0:1], {A_WO}")
    k(f"s_load_dwordx4 s[68:71], s[0:1], {A_WD}")
    k(f"s_load_dwordx2 s[72:73], s[0:1], {A_WS}")
    k(f"v_lshrrev_b32 v{a}, 6, v0")
    k(f"v_and_b32 v0, 63, v0")
    k(f"v_readfirstlane_b32 s{s_w}, v{a}")
    k(f"s_bfe_u32 s{s_role}, s2, 0x10002")
    k(f"s_bfe_u32 s{t0}, s2, 0x10001")
    k(f"s_lshl_b32 s{t0}, s{t0}, 3")
    k(f"s_lshr_b32 s{t1}, s2, 5")
    k(f"s_add_u32 s{t0}, s{t0}, s{t1}")
    k(f"s_and_b32 s{t1}, s2, 1")
    k(f"s_lshl_b32 s{t1}, s{t1}, 2")
    k(f"s_bfe_u32 s{t2}, s2, 0x20003")
    k(f"s_add_u32 s{t1}, s{t1}, s{t2}")
    k(f"v_lshlrev_b32 v{vL16}, 4, v0")
    k(f"v_bfe_u32 v{a}, v0, 2, 2")
    k(f"v_lshrrev_b32 v{b}, 4, v0")
    k(f"v_and_b32 v{c}, 3, v0")
    k(f"v_lshlrev_b32 v{d}, 6, v{b}")
    k(f"v_lshl_add_u32 v{d}, v{c}, 4, v{d}")
    k(f"v_lshl_add_u32 v{vDW[0]}, v{a}, 11, v{d}")
    k(f"s_lshl_b32 s{t2}, s{t1}, 8")
    k(f"s_lshl_b32 s{t3}, s{s_w}, 16")
    k(f"s_add_u32 s{t2}, s{t2}, s{t3}")
    k(f"v_add_u32 v{vDW[0]}, s{t2}, v{vDW[0]}")
    k(f"v_xor_b32 v{e}, 32, v{vDW[0]}")
    k(f"v_add_u32 v{vDW[1]}, {1*(8192-1024)}, v{e}")
    k(f"v_add_u32 v{vDW[2]}, {2*(8192-1024)}, v{vDW[0]}")
    k(f"v_add_u32 v{vDW[3]}, {3*(8192-1024)}, v{e}")
    k(f"s_lshl_b32 s{s_cW}, s{s_w}, 13")
    k(f"s_add_u32 s{s_cW2}, s{s_cW}, 4096")
    k(f"s_cmp_eq_u32 s{s_role}, 1")
    k(f"s_cselect_b32 s{s_ns}, 7, 8")
    k(f"s_lshl_b32 s{t2}, s{s_ns}, 14")
    k(f"s_lshl_b32 s{t3}, s{t0}, 3")
    k(f"s_lshl_b32 s{s_xo}, s{s_w}, 1")
    k(f"s_add_u32 s{t3}, s{t3}, s{s_xo}")
    k(f"s_mul_i32 s{s_xo}, s{t3}, s{t2}")
    k(f"v_add_u32 v{vA[0]}, s{s_xo}, v{vL16}")
    k(f"v_add_u32 v{vA[1]}, s{t2}, v{vA[0]}")
    k(f"s_mov_b32 s{s_aoff}, {OF_OFF}")
    k(f"s_cmp_eq_u32 s{s_role}, 1")
    k(f"s_cselect_b32 s{s_aoff}, {HF_OFF}, s{s_aoff}")
    k("s_waitcnt lgkmcnt(0)")
    srd(k, sWS, 72, 73, WS_BYTES)
    k(f"s_cmp_eq_u32 s{s_role}, 1")
    k(f"s_cselect_b32 s66, s68, s66")
    k(f"s_cselect_b32 s67, s69, s67")
    k(f"s_mov_b32 s{sW}, s66")
    k(f"s_and_b32 s{sW+1}, s67, 0xffff")
    k(f"s_lshl_b32 s{sW+2}, s{s_ns}, 20")
    k(f"s_mov_b32 s{sW+3}, 0x20000")
    P.stamp()

    def dma(n):
        out = [(f"s_add_u32 m0, s{s_wr}, s{s_cW}", None)]
        for q in range(4):
            out.append((f"buffer_load_dwordx4 v{vDW[q]}, s[{sW}:{sW+3}], s{s_woff} offen offset:{q*1024} lds", ('W', n)))
        out.append((f"s_add_u32 s{s_woff}, s{s_woff}, {128*2048}", None))
        out.append((f"s_add_u32 m0, s{s_wr}, s{s_cW2}", None))
        for q in range(4):
            out.append((f"buffer_load_dwordx4 v{vDW[q]}, s[{sW}:{sW+3}], s{s_woff2} offen offset:{q*1024} lds", ('W', n)))
        out.append((f"s_add_u32 s{s_woff2}, s{s_woff2}, {128*2048}", None))
        return out

    def act_loads(u):
        return [(f"buffer_load_dwordx4 {ACT[u % 8][kk][tb]}, v{vA[tb]}, s[{sWS}:{sWS+3}], s{s_aoff} offen offset:{((u & 1)*2 + kk)*1024}",
                 ('A', u % 8)) for kk in range(2) for tb in range(2)]

    def wread(G):
        pg = G % 16
        uh, c_ = divmod(pg, 8)
        res = []
        for kk in range(2):
            dst = WR[(2 * G + kk) % 8]
            for e_ in range(2):
                res.append((f"ds_read_b64_tr_b16 {dst[2*e_:2*e_+2]}, v{vWrd[c_ & 1]} offset:{(2*uh+kk)*8192 + e_*4096 + (c_ >> 1)*256}", ('WF', G % 4)))
        return res

    def em(lst):
        for t_, tag in lst:
            k(t_, tag=tag)

    k(f"s_mov_b32 s{s_woff}, 0")
    k(f"s_mov_b32 s{s_woff2}, 32768")
    for n in range(4):
        k(f"s_mov_b32 s{s_wr}, {n*S2}")
        em(dma(n))
        em(act_loads(2 * n))
        if n < 3:
            em(act_loads(2 * n + 1))
            k(f"s_add_u32 s{s_aoff}, s{s_aoff}, 4096")
    k(f"s_mov_b32 s{s_wr}, {4*S2}")
    k(f"s_mov_b32 s{s_rd}, 0")
    srd(k, sX, 64, 65, 4 * MB)
    srd(k, sOUT, 70, 71, 4 * MB)
    k(f"s_lshl_b32 s{s_xo}, s{t3}, 15")
    k(f"s_lshl_b32 s{t2}, s{t1}, 8")
    k(f"s_add_u32 s{s_xo}, s{s_xo}, s{t2}")
    k(f"v_and_b32 v{e}, 15, v0")
    k(f"v_lshlrev_b32 v{e}, 11, v{e}")
    k(f"v_lshl_add_u32 v{vXo}, v{b}, 3, v{e}")
    k(f"v_lshl_add_u32 v{vOo}, v{b}, 4, v{e}")
    k(f"s_lshl_b32 s{t2}, s{t0}, 3")
    k(f"s_add_u32 s{t2}, s{t2}, s{t1}")
    k(f"s_lshl_b32 s{t2}, s{t2}, 2")
    k(f"s_add_u32 s{t2}, s{t2}, s{s_w}")
    k(f"s_lshl_b32 s{s_ex}, s{t2}, 13")
    k(f"s_add_u32 s{s_ex}, s{s_ex}, {EX_OFF}")
    k(f"s_lshl_b32 s{s_fl}, s{t2}, 8")
    k(f"s_add_u32 s{s_fl}, s{s_fl}, {FL_OFF}")
    k(f"v_mov_b32 v{vZ}, 0")
    k(f"s_mov_b32 s{s_have}, 0")
    k(f"v_lshlrev_b32 v{vWrd0[0]}, 3, v{c}")
    k(f"v_lshl_add_u32 v{vWrd0[0]}, v{a}, 6, v{vWrd0[0]}")
    k(f"v_lshl_add_u32 v{vWrd0[0]}, v{b}, 10, v{vWrd0[0]}")
    k(f"v_and_b32 v{e}, 1, v{b}")
    k(f"v_lshl_add_u32 v{vWrd0[0]}, v{e}, 5, v{vWrd0[0]}")
    k(f"v_xor_b32 v{vWrd0[1]}, 32, v{vWrd0[0]}")
    for h_ in range(2):
        k(f"v_mov_b32 v{vWrd[h_]}, v{vWrd0[h_]}")
    for r in range(32, 96, 2):
        k(f"v_mov_b64 v[{r}:{r+1}], 0")
    k(f"s_sub_u32 s{s_cnt}, s{s_ns}, 1")
    k.need(vm=[('W', 0)])
    k("s_barrier")
    P.stamp()
    for G in range(RA):
        em(wread(G))

    def ld_partner():
        for i in range(8):
            k(f"buffer_load_dwordx4 {PB[4*i:4*i+4]}, v{vL16}, s[{sWS}:{sWS+3}], s{s_ex} offen offset:{(i & 3)*1024} sc1")
            if i == 3:
                k(f"s_add_u32 s{s_ex}, s{s_ex}, 4096")

    def stage(n, tail=None):
        fill = [[[] for _ in range(4)] for _ in range(16)]
        BP = 15 - RA + 1
        last = tail == 3
        for p in range(16):
            if p + RA <= 15:
                for m, x in enumerate(wread(n * 16 + p + RA)):
                    fill[p][m].append(x)
        if not last:
            flat = [x for i in range(RA) for x in wread((n + 1) * 16 + i)]
            slots = [(p, m) for p in range(BP + 1, 16) for m in range(4)]
            per = (len(flat) + len(slots) - 1) // len(slots)
            for i, x in enumerate(flat):
                p, m = slots[i // per]
                fill[p][m].append(x)
        if tail is None:
            seq = dma(n + 4)
            p = 0
            for x in seq:
                if x[0].startswith("buffer"):
                    fill[p][1].append(x); p += 2
                else:
                    fill[min(p, 15)][0].append(x)
        if tail is None or tail == 0:
            l0 = act_loads(2 * n + 7)
            for i, x in enumerate(l0):
                fill[1 + 2 * i][1].append(x)
            if tail is None:
                fill[8][3].append((f"s_add_u32 s{s_aoff}, s{s_aoff}, 4096", None))
                l1 = act_loads(2 * n + 8)
                for i, x in enumerate(l1):
                    fill[9 + 2 * i][1].append(x)
        pre = {}
        if tail == 0:
            def f():
                k(f"v_mov_b32 v{vTk}, 1")
                k("s_mov_b64 exec, 1")
                k(f"buffer_atomic_add v{vTk}, v{vZ}, s[{sWS}:{sWS+3}], s{s_fl} offen sc0 sc1", tag='TK')
                k("s_mov_b64 exec, -1")
            pre[9] = f
            for c_ in range(8):
                for tb in range(2):
                    fill[10 + (2 * c_ + tb) // 3][1 + (2 * c_ + tb) % 3].append(
                        (f"buffer_load_dwordx2 {XR[c_][tb]}, v{vXo}, s[{sX}:{sX+3}], s{s_xo if tb == 0 else t3} offen offset:{c_*32}", 'X'))
            pre[8] = lambda: k(f"s_add_u32 s{t3}, s{s_xo}, 32768")
        if tail == 2:
            def f():
                k.need(vm=['TK'])
                k(f"v_readfirstlane_b32 s{s_tk}, v{vTk}")
                k(f"buffer_load_dword v{vFl}, v{vZ}, s[{sWS}:{sWS+3}], s{s_fl} offen offset:128 sc1", tag='FL')
            pre[0] = f
        if tail == 3:
            def f():
                k.need(vm=['FL'])
                k(f"v_readfirstlane_b32 s{t0}, v{vFl}")
                k(f"s_and_b32 s{s_have}, s{t0}, s{s_tk}")
                k(f"s_cmp_eq_u32 s{s_have}, 0")
                k("s_cbranch_scc1 p2_nopre")
                k.notrace = True
                ld_partner()
                k.notrace = False
                k.label("p2_nopre")
            pre[0] = f
        for p in range(16):
            uh, c_ = divmod(p, 8)
            G = n * 16 + p
            u = 2 * n + uh
            if p in pre:
                pre[p]()
            k.need(vm=[('A', u % 8)] if c_ == 0 else [], lg=[('WF', G % 4)])
            for m, (tb, kk) in enumerate(((0, 0), (0, 1), (1, 1), (1, 0))):
                k(f"{M16} {ACC[c_][tb]}, {WR[(2*G+kk) % 8]}, {ACT[u % 8][kk][tb]}, {ACC[c_][tb]}")
                em(fill[p][m])
            if p == BP and not last:
                k(f"s_mov_b32 s{s_wr}, s{s_rd}")
                k(f"s_add_u32 s{s_rd}, s{s_rd}, {S2}")
                k(f"s_cmp_eq_u32 s{s_rd}, {5*S2}")
                k(f"s_cselect_b32 s{s_rd}, 0, s{s_rd}")
                for h_ in range(2):
                    k(f"v_add_u32 v{vWrd[h_]}, s{s_rd}, v{vWrd0[h_]}")
                k.need(vm=[('W', n + 1)], lg=[('WF', (n * 16 + 15) % 4)])
                k("s_barrier")

    NIT = 3
    for it in range(NIT):
        k.loop_iter("g2", it)
        k.label("p2_loop")
        for j in range(4):
            stage(4 * it + j)
        k(f"s_sub_u32 s{s_cnt}, s{s_cnt}, 1")
        k(f"s_cmp_lg_u32 s{s_cnt}, 0")
        k("s_cbranch_scc1 p2_loop")
    k.loop_end("g2")
    for j in range(4):
        stage(4 * NIT + j, tail=j)
    P.stamp()
    k(f"s_cmp_eq_u32 s{s_role}, 0")
    k("s_cbranch_scc1 p2_nosilu")
    for c_ in range(8):
        for tb in range(2):
            A_ = ACC[c_][tb]
            tt = T[4 * ((2 * c_ + tb) & 3): 4 * ((2 * c_ + tb) & 3) + 4]
            for r in range(4):
                k(f"v_mul_f32 {tt[r]}, {f32bits(-LOG2E):#x}, {A_[r]}")
            for r in range(4):
                k(f"v_exp_f32 {tt[r]}, {tt[r]}")
            for r in range(4):
                k(f"v_add_f32 {tt[r]}, 1.0, {tt[r]}")
            for r in range(4):
                k(f"v_rcp_f32 {tt[r]}, {tt[r]}")
            for r in range(4):
                k(f"v_mul_f32 {A_[r]}, {A_[r]}, {tt[r]}")
    k.label("p2_nosilu")
    k(f"s_cmp_lg_u32 s{s_tk}, 0")
    k("s_cbranch_scc1 p2_consumer")
    k.notrace = True
    for i in range(8):
        for tb in range(2):
            A_ = ACC[i][tb]
            k(f"v_cvt_pk_bf16_f32 {PB[4*i+2*tb]}, {A_[0]}, {A_[1]}")
            k(f"v_cvt_pk_bf16_f32 {PB[4*i+2*tb+1]}, {A_[2]}, {A_[3]}")
        k(f"buffer_store_dwordx4 {PB[4*i:4*i+4]}, v{vL16}, s[{sWS}:{sWS+3}], s{s_ex} offen offset:{(i & 3)*1024} sc1")
        if i == 3:
            k(f"s_add_u32 s{s_ex}, s{s_ex}, 4096")
    k(f"v_mov_b32 v{vTk}, 1")
    k("s_waitcnt vmcnt(0)")
    k("s_mov_b64 exec, 1")
    k(f"buffer_store_dword v{vTk}, v{vZ}, s[{sWS}:{sWS+3}], s{s_fl} offen offset:128 sc1")
    k("s_mov_b64 exec, -1")
    k("s_branch p2_fin")
    k.label("p2_consumer")
    k(f"s_cmp_lg_u32 s{s_have}, 0")
    k("s_cbranch_scc1 p2_have")
    k.label("p2_poll")
    k(f"buffer_load_dword v{vFl}, v{vZ}, s[{sWS}:{sWS+3}], s{s_fl} offen offset:128 sc1")
    k("s_waitcnt vmcnt(0)")
    k(f"v_readfirstlane_b32 s{t0}, v{vFl}")
    k(f"s_cmp_lg_u32 s{t0}, 0")
    k("s_cbranch_scc1 p2_go")
    k("s_sleep 4")
    k("s_branch p2_poll")
    k.label("p2_go")
    ld_partner()
    k.label("p2_have")
    k("s_waitcnt vmcnt(0)")
    for m in range(4):
        for tb in range(2):
            tt = T[8 * tb: 8 * tb + 8]
            for h_ in range(2):
                c_ = 2 * m + h_
                A_, X_ = ACC[c_][tb], XR[c_][tb]
                pp = PB[4 * c_ + 2 * tb: 4 * c_ + 2 * tb + 2]
                for r in range(2):
                    k(f"v_lshlrev_b32 {tt[4*h_]}, 16, {pp[r]}")
                    k(f"v_and_b32 {tt[4*h_+1]}, 0xffff0000, {pp[r]}")
                    k(f"v_lshlrev_b32 {tt[4*h_+2]}, 16, {X_[r]}")
                    k(f"v_and_b32 {tt[4*h_+3]}, 0xffff0000, {X_[r]}")
                    k(f"v_fma_f32 {A_[2*r]}, {A_[2*r]}, {tt[4*h_]}, {tt[4*h_+2]}")
                    k(f"v_fma_f32 {A_[2*r+1]}, {A_[2*r+1]}, {tt[4*h_+1]}, {tt[4*h_+3]}")
            Q4 = ACC[2 * m][tb]
            B4 = ACC[2 * m + 1][tb]
            k(f"v_cvt_pk_bf16_f32 {Q4[0]}, {Q4[0]}, {Q4[1]}")
            k(f"v_cvt_pk_bf16_f32 {Q4[1]}, {Q4[2]}, {Q4[3]}")
            k(f"v_cvt_pk_bf16_f32 {Q4[2]}, {B4[0]}, {B4[1]}")
            k(f"v_cvt_pk_bf16_f32 {Q4[3]}, {B4[2]}, {B4[3]}")
            k(f"v_permlane32_swap_b32 {Q4[0]}, {Q4[2]}")
            k(f"v_permlane32_swap_b32 {Q4[1]}, {Q4[3]}")
            k(f"v_permlane16_swap_b32 {Q4[0]}, {Q4[2]}")
            k(f"v_permlane16_swap_b32 {Q4[1]}, {Q4[3]}")
            k(f"buffer_store_dwordx4 {Q4}, v{vOo}, s[{sOUT}:{sOUT+3}], s{s_xo if tb == 0 else t3} offen offset:{m*64}")
    k.label("p2_fin")
    k.notrace = False
    P.stamp()
    if prof:
        k("s_waitcnt vmcnt(0)")
        P.stamp()
        P.dump(sWS, s_w, 176)
    k.label("p2_end")
    k("s_endpgm")
    k.finalize(verbose=verbose)
    return (k, 512, 102, 256, 256, 256, 160 * 1024)


HEADER = open("recurrent_scan__sliding_block_cached__glu_gated_bilinear__prompt.s.ref").read().split("; Override launch")[0]

if __name__ == "__main__":
    import argparse
    ap = argparse.ArgumentParser()
    ap.add_argument("--prof", action="store_true")
    ap.add_argument("-v", action="store_true")
    ap.add_argument("-o", default="main.s")
    args = ap.parse_args()
    ks = [gen_ln(), gen_p1(prof=args.prof, verbose=args.v), gen_p2(prof=args.prof, verbose=args.v)]
    open(args.o, "w").write(build_file(HEADER, ks))
    for kk in ks:
        print(kk[0].name, kk[0].stats())
```
